```python
import torch

def _softmax(x, axis=-1):
    return torch.softmax(x, dim=axis)
def _gelu(x):
    return torch.nn.functional.gelu(x, approximate="tanh")
def _silu(x):
    return torch.nn.functional.silu(x)
def _sigmoid(x):
    return torch.sigmoid(x)
def _layernorm(x, axis=-1, eps=1e-5):
    m = x.mean(dim=axis, keepdim=True)
    v = x.var(dim=axis, keepdim=True, unbiased=False)
    return (x - m) / torch.sqrt(v + eps)
def _scatter_add(tgt, idx, src, axis=0):
    return tgt.clone().index_add_(axis, idx, src)
def _segment_sum(src, seg, n):
    out = torch.zeros((n,) + src.shape[1:], dtype=src.dtype)
    return out.index_add_(0, seg, src)
def _pad(x, pw):
    flat = tuple(v for pair in reversed(pw) for v in pair)
    return torch.nn.functional.pad(x, flat)

kernel_name = 'concat_heads__sliding_block_cached__compressed_kv_cla__decode'

def setup_inputs():

    _w = (lambda a: (lambda t: t.to(torch.bfloat16) if t.is_floating_point() else t)(torch.as_tensor(a)))
    def _A_setup():
        B, Sq, D = 2, 1, 512
        Hq, Hkv, Sk, Dh = 32, 8, 8192, 128
        assert Hq % Hkv == 0, (Hq, Hkv)
        return {
            "x": _w((lambda *s: torch.randn(*s, dtype=torch.bfloat16) * 1.6)(B, Sq, D)),
            "k_cache": _w((lambda *s: torch.randn(*s, dtype=torch.bfloat16) * 1.6)(B, Hkv, Sk, Dh)),
            "v_cache": _w((lambda *s: torch.randn(*s, dtype=torch.bfloat16) * 0.05)(B, Hkv, Sk, Dh)),
            "wq": _w((lambda *s: torch.randn(*s, dtype=torch.bfloat16) * 1.6)(D, Hq * Dh) * (D ** -0.5)),
            "wo": _w((lambda *s: torch.randn(*s, dtype=torch.bfloat16) * 0.05)(Hq * Dh, D) * ((Hq * Dh) ** -0.5)),
        }
    _A_in = _A_setup()

    def _B_setup():
        B, H, Sq, Sk, D, M = 2, 32, 1, 8192, 128, 512
        Dc = 4 * D
        return {
            "x": _w((lambda *s: torch.randn(*s, dtype=torch.bfloat16) * 3.2)(B, Sq, M)),
            "c_kv": _w((lambda *s: torch.randn(*s, dtype=torch.bfloat16) * 0.1)(B, Sk, Dc)),
            "w_q": _w((lambda *s: torch.randn(*s, dtype=torch.bfloat16) * 6.4)(M, H, D) * (M ** -0.5)),
            "w_uk": _w((lambda *s: torch.randn(*s, dtype=torch.bfloat16) * 6.4)(Dc, H, D) * (Dc ** -0.5)),
            "w_uv": _w((lambda *s: torch.randn(*s, dtype=torch.bfloat16) * 0.1)(Dc, H, D) * (Dc ** -0.5)),
            "w_o": _w((lambda *s: torch.randn(*s, dtype=torch.bfloat16) * 0.1)(H, D, M) * ((H * D) ** -0.5)),
        }
    _B_in = _B_setup()

    return {
        "A_x": _A_in["x"],
        "A_k_cache": _A_in["k_cache"],
        "A_v_cache": _A_in["v_cache"],
        "A_wq": _A_in["wq"],
        "A_wo": _A_in["wo"],
        "B_x": _B_in["x"],
        "B_c_kv": _B_in["c_kv"],
        "B_w_q": _B_in["w_q"],
        "B_w_uk": _B_in["w_uk"],
        "B_w_uv": _B_in["w_uv"],
        "B_w_o": _B_in["w_o"],
    }

def reference(A_x, A_k_cache, A_v_cache, A_wq, A_wo, B_x, B_c_kv, B_w_q, B_w_uk, B_w_uv, B_w_o):
    def _A_ref(x, k_cache, v_cache, wq, wo):
        B, Sq, D = x.shape
        Hq, Dh = 32, 128
        Hkv, Sk = k_cache.shape[1], k_cache.shape[2]
        W = min(4096, max(256, Sk // 4))
        rep = Hq // Hkv
        q = (lambda x, *d: x.permute(*d))((x @ wq).reshape(B, Sq, Hq, Dh), 0, 2, 1, 3)
        k = (lambda x, n, axis: torch.repeat_interleave(x, n, dim=axis))(k_cache[:, :, Sk - W:, :], rep, axis=1)
        v = (lambda x, n, axis: torch.repeat_interleave(x, n, dim=axis))(v_cache[:, :, Sk - W:, :], rep, axis=1)
        scores = torch.einsum("bhqd,bhkd->bhqk", q, k) * (Dh ** -0.5)
        p = _softmax(scores, axis=-1)
        o = torch.einsum("bhqk,bhkd->bhqd", p, v)
        return (lambda x, *d: x.permute(*d))(o, 0, 2, 1, 3).reshape(B, Sq, Hq * Dh) @ wo

    def _B_ref(x, c_kv, w_q, w_uk, w_uv, w_o):
        B, Sq, M = x.shape[0], x.shape[1], x.shape[2]
        Sk = c_kv.shape[1]
        H, D = w_q.shape[1], w_q.shape[2]
        q = torch.einsum("bqm,mhd->bhqd", x, w_q)
        k = torch.einsum("bkc,chd->bhkd", c_kv, w_uk)
        v = torch.einsum("bkc,chd->bhkd", c_kv, w_uv)
        scores = torch.einsum("bhqd,bhkd->bhqk", q, k) * (D ** -0.5)
        off = Sk - Sq
        qi = torch.arange(Sq)[:, None]
        kj = torch.arange(Sk)[None, :]
        cmask = kj <= (qi + off)
        scores = torch.where(cmask[None, None], scores, -1e9)
        p = _softmax(scores, axis=-1)
        ctx = torch.einsum("bhqk,bhkd->bhqd", p, v)
        return torch.einsum("bhqd,hdm->bqm", ctx, w_o)

    a = _A_ref(A_x, A_k_cache, A_v_cache, A_wq, A_wo)
    b = _B_ref(B_x, B_c_kv, B_w_q, B_w_uk, B_w_uv, B_w_o)
    return torch.concatenate([a, b], axis=-1)
```

```python
class G:
    def __init__(self):
        self.L = []; self.n = 0
    def e(self, s): self.L.append("  " + s)
    def c(self, s): self.L.append("  ; " + s)
    def lab(self, name): self.L.append(name + ":")
    def newlab(self, p):
        self.n += 1; return f"L_{p}_{self.n}"
    def text(self): return "\n".join(self.L) + "\n"

def vr(a, n=1):
    return f"v{a}" if n == 1 else f"v[{a}:{a+n-1}]"
def sr(a, n=1):
    return f"s{a}" if n == 1 else f"s[{a}:{a+n-1}]"
```

```python
import sys, os
sys.path.insert(0, os.path.dirname(os.path.abspath(__file__)))
from core import *

KNAME = "concat_heads__sliding_block_cached__compressed_kv_cla__decode"
STOP = int(os.environ.get("STOP", "4"))
OUTPATH = os.environ.get("OUTPATH", f"cdna_kernels/{KNAME}.s")

P_AX, P_AK, P_AV, P_AWQ, P_AWO = 36, 38, 40, 42, 44
P_BX, P_BCKV, P_BWQ, P_BWUK, P_BWUV, P_BWO = 46, 48, 50, 52, 54, 56
P_OUT, P_DBG, P_WS = 58, 60, 62
SZ_X, SZ_KV, SZ_W, SZ_CKV = 2048, 33554432, 4194304, 16777216
SZ_WS = 268435456
WS_QA   = 0x000000
WS_QABS = 0x010000
WS_PA   = 0x040000
WS_SA   = 0x080000
WS_SB   = 0x090000
WS_PC   = 0x0A0000
WS_PO   = 0x100000
WS_PB   = 0x400000
L_BIG = 0x8000
S_WS = 4
S_R0, S_R1, S_R2 = 8, 12, 16
S_DBG = 68
S_WAVE, S_UNIT = 64, 65
S_EX = 72
S_CNT = 74

g = G()
e, c_ = g.e, g.c

def srd(slot, ptr, nbytes):
    e(f"s_mov_b32 s{slot}, s{ptr}")
    e(f"s_and_b32 s{slot+1}, s{ptr+1}, 0xffff")
    e(f"s_mov_b32 s{slot+2}, {nbytes}")
    e(f"s_mov_b32 s{slot+3}, 0x00020000")

def publish_flag(val):
    e(f"v_mov_b32 v250, s2")
    e(f"v_mov_b32 v251, {val}")
    e("v_cmp_eq_u32 vcc, 0, v1")
    e(f"s_and_saveexec_b64 s[{S_EX}:{S_EX+1}], vcc")
    e(f"buffer_store_byte v251, v250, s[{S_DBG}:{S_DBG+3}], 0 offen sc1")
    e(f"s_mov_b64 exec, s[{S_EX}:{S_EX+1}]")

def poll(vmask, tag):
    lp, dn = g.newlab(tag + "_poll"), g.newlab(tag + "_done")
    e("v_lshlrev_b32 v253, 2, v1")
    e(f"s_mov_b32 s{S_CNT}, 0x40000")
    g.lab(lp)
    e(f"buffer_load_dword v252, v253, s[{S_DBG}:{S_DBG+3}], 0 offen sc1")
    e("s_waitcnt vmcnt(0)")
    e(f"v_and_b32 v252, v252, v{vmask}")
    e(f"v_cmp_ne_u32 vcc, v252, v{vmask}")
    e("s_nop 1")
    e("s_cmp_eq_u64 vcc, 0")
    e(f"s_cbranch_scc1 {dn}")
    e(f"s_sub_u32 s{S_CNT}, s{S_CNT}, 1")
    e(f"s_cmp_lg_u32 s{S_CNT}, 0")
    e(f"s_cbranch_scc1 {lp}")
    g.lab(dn)

def lane_range_mask(vdst, ranges, bit, tmp=254):
    e(f"v_mov_b32 v{vdst}, 0")
    for (lo, hi) in ranges:
        if isinstance(lo, str):
            e(f"v_subrev_u32 v{tmp}, {lo}, v1")
            e(f"v_cmp_gt_u32 vcc, {hi}, v{tmp}")
        else:
            assert lo % 4 == 0 and hi % 4 == 0
            e(f"v_subrev_u32 v{tmp}, {lo//4}, v1")
            e(f"v_cmp_gt_u32 vcc, {(hi-lo)//4}, v{tmp}")
        e(f"v_mov_b32 v{tmp}, {bit*0x01010101}")
        e(f"v_cndmask_b32 v{vdst}, v{vdst}, v{tmp}, vcc")

def dpp_sum(regs, rors, op="add"):
    for r in rors:
        for x in regs:
            e(f"v_{op}_f32_dpp v{x}, v{x}, v{x} row_ror:{r} row_mask:0xf bank_mask:0xf")

def swap_red(regs, tmps, which, op="add"):
    ins = "v_permlane16_swap_b32" if which == 16 else "v_permlane32_swap_b32"
    for x, t in zip(regs, tmps): e(f"v_mov_b32 v{t}, v{x}")
    if len(regs) < 3: e("s_nop 1")
    for x, t in zip(regs, tmps): e(f"{ins} v{x}, v{t}")
    for x, t in zip(regs, tmps): e(f"v_{op}_f32 v{x}, v{x}, v{t}")

def unpack_fma(d, lo_t, hi_t, accs_lo, accs_hi, xs):
    e(f"v_lshlrev_b32 v{lo_t}, 16, v{d}")
    e(f"v_and_b32 v{hi_t}, 0xffff0000, v{d}")
    for b in range(len(xs)):
        e(f"v_fmac_f32 v{accs_lo[b]}, v{lo_t}, v{xs[b]}")
        e(f"v_fmac_f32 v{accs_hi[b]}, v{hi_t}, v{xs[b]}")

def prologue():
    g.L.append(f"; generated by gen/gen.py  (STOP={STOP})")
    g.L.append("; @launch grid=(256,1,1) block=(512,1,1) lds=163840")
    g.L.append('.amdgcn_target "amdgcn-amd-amdhsa--gfx950"')
    g.L.append(".text")
    g.L.append(f".globl {KNAME}_kernel")
    g.L.append(".p2align 8")
    g.L.append(f".type {KNAME}_kernel,@function")
    g.lab(f"{KNAME}_kernel")
    e("s_cmp_ge_u32 s2, 256")
    e("s_cbranch_scc1 L_END")
    e("s_load_dwordx16 s[36:51], s[0:1], 0")
    e("s_load_dwordx8 s[52:59], s[0:1], 64")
    e("s_load_dwordx4 s[60:63], s[0:1], 96")
    e("v_lshrrev_b32 v2, 6, v0")
    e("v_and_b32 v1, 63, v0")
    e(f"v_readfirstlane_b32 s{S_WAVE}, v2")
    e("s_waitcnt lgkmcnt(0)")
    srd(S_WS, P_WS, SZ_WS)
    srd(S_DBG, P_DBG, 256)
    e("s_cmp_lt_u32 s2, 128")
    e("s_cbranch_scc1 L_BPATH")

def s1a():
    c_("==== S1A: q_A slice: 32 columns x 512 rows")
    e(f"s_sub_u32 s{S_UNIT}, s2, 128")
    srd(S_R0, P_AWQ, SZ_W)
    srd(S_R1, P_AX, SZ_X)
    e("v_lshrrev_b32 v2, 2, v1")
    e("v_and_b32 v3, 3, v1")
    e("v_lshlrev_b32 v4, 15, v2")
    e("v_lshl_add_u32 v4, v3, 4, v4")
    e(f"s_lshl_b32 s28, s{S_UNIT}, 6")
    e(f"s_lshl_b32 s29, s{S_WAVE}, 19")
    e("s_add_u32 s28, s28, s29")
    e(f"s_lshl_b32 s29, s{S_WAVE}, 7")
    e("v_lshlrev_b32 v5, 3, v2")
    e("v_add_u32 v5, s29, v5")
    e(f"buffer_load_dwordx2 v[8:9], v5, s[{S_R1}:{S_R1+3}], 0 offen")
    e(f"buffer_load_dwordx2 v[10:11], v5, s[{S_R1}:{S_R1+3}], 0 offen offset:1024")
    for j in range(4):
        e(f"buffer_load_dwordx4 v[{48+4*j}:{51+4*j}], v4, s[{S_R0}:{S_R0+3}], s28 offen nt")
        if j < 3: e("s_add_u32 s28, s28, 8192")
    for a in range(32, 48): e(f"v_mov_b32 v{a}, 0")
    e("s_waitcnt vmcnt(4)")
    for b in range(2):
        for j in range(4):
            src = 8 + 2*b + (j >> 1)
            if j & 1: e(f"v_and_b32 v{12+4*b+j}, 0xffff0000, v{src}")
            else:     e(f"v_lshlrev_b32 v{12+4*b+j}, 16, v{src}")
    for j in range(4):
        e(f"s_waitcnt vmcnt({3-j})")
        for k in range(4):
            unpack_fma(48+4*j+k, 20, 21, [32+2*k, 40+2*k], [33+2*k, 41+2*k], [12+j, 16+j])
    accs = list(range(32, 48))
    e("s_nop 1")
    dpp_sum(accs, [4, 8])
    swap_red(accs, list(range(48, 64)), 16)
    swap_red(accs, list(range(48, 64)), 32)
    RED = 0x0000
    e(f"s_lshl_b32 s29, s{S_WAVE}, 8")
    e(f"s_add_u32 s29, s29, {RED}")
    e("v_lshlrev_b32 v6, 6, v1")
    e("v_add_u32 v6, s29, v6")
    e("v_cmp_gt_u32 vcc, 4, v1")
    e(f"s_and_saveexec_b64 s[{S_EX}:{S_EX+1}], vcc")
    for q in range(4):
        e(f"ds_write_b128 v6, v[{32+4*q}:{35+4*q}] offset:{16*q}")
    e(f"s_mov_b64 exec, s[{S_EX}:{S_EX+1}]")
    e("s_waitcnt lgkmcnt(0)")
    e("s_barrier")
    skip = g.newlab("s1a_skip")
    e(f"s_cmp_lg_u32 s{S_WAVE}, 0")
    e(f"s_cbranch_scc1 {skip}")
    e("v_and_b32 v2, 31, v1")
    e("v_lshrrev_b32 v3, 5, v1")
    e("v_lshrrev_b32 v4, 3, v2")
    e("v_lshlrev_b32 v4, 6, v4")
    e("v_and_b32 v5, 7, v2")
    e("v_lshl_add_u32 v5, v3, 3, v5")
    e("v_lshl_add_u32 v4, v5, 2, v4")
    for w in range(8):
        e(f"ds_read_b32 v{20+w}, v4 offset:{RED + 256*w}")
    e("s_waitcnt lgkmcnt(0)")
    e("v_add_f32 v20, v20, v21\n  v_add_f32 v22, v22, v23\n  v_add_f32 v24, v24, v25\n  v_add_f32 v26, v26, v27")
    e("v_add_f32 v20, v20, v22\n  v_add_f32 v24, v24, v26\n  v_add_f32 v20, v20, v24")
    e("v_cvt_pk_bf16_f32 v20, v20, v20")
    e(f"s_lshl_b32 s29, s{S_UNIT}, 6")
    e("v_lshlrev_b32 v6, 13, v3")
    e("v_lshl_add_u32 v6, v2, 1, v6")
    e("v_add_u32 v6, s29, v6")
    e(f"buffer_store_short v20, v6, s[{S_WS}:{S_WS+3}], 0 offen offset:{WS_QA} sc1")
    e("s_waitcnt vmcnt(0)")
    publish_flag(1)
    g.lab(skip)

NB1 = 4
def ckv_dma(rows, voff_tmpbase):
    for idx, r in enumerate(rows):
        t = voff_tmpbase + (idx % 4)
        e(f"v_xor_b32 v{t}, {r << 4}, v240")
        if r % 4 == 0:
            e(f"s_add_u32 s75, s31, {r*1024}")
            e("s_mov_b32 m0, s75")
            e(f"s_add_u32 s76, s30, {r*1024}")
        e(f"buffer_load_dwordx4 v{t}, s[{S_R2}:{S_R2+3}], s76 offen offset:{(r%4)*1024} nt lds")

def s1b():
    c_("==== S1B: q (512x128 head slice, replicated per c-quarter) then q_abs quarter")
    e(f"s_mov_b32 s{S_UNIT}, s2")
    e("s_and_b32 s77, s2, 7")
    e("s_lshl_b32 s77, s77, 2")
    e("s_lshr_b32 s28, s2, 3")
    e("s_and_b32 s28, s28, 3")
    e("s_add_u32 s77, s77, s28")
    e("s_lshr_b32 s78, s2, 5")
    srd(S_R0, P_BWQ, SZ_W)
    srd(S_R1, P_BX, SZ_X)
    e("v_lshrrev_b32 v2, 4, v1")
    e("v_and_b32 v3, 15, v1")
    e("v_lshlrev_b32 v240, 4, v1")
    e("v_lshlrev_b32 v4, 17, v2")
    e("v_lshl_add_u32 v4, v3, 4, v4")
    e("s_lshl_b32 s28, s77, 8")
    e(f"s_lshl_b32 s29, s{S_WAVE}, 19")
    e("s_add_u32 s28, s28, s29")
    e(f"s_lshl_b32 s29, s{S_WAVE}, 7")
    e("v_lshlrev_b32 v5, 5, v2")
    e("v_add_u32 v5, s29, v5")
    e(f"buffer_load_dwordx4 v[8:11], v5, s[{S_R1}:{S_R1+3}], 0 offen")
    e(f"buffer_load_dwordx4 v[12:15], v5, s[{S_R1}:{S_R1+3}], 0 offen offset:16")
    e(f"buffer_load_dwordx4 v[16:19], v5, s[{S_R1}:{S_R1+3}], 0 offen offset:1024")
    e(f"buffer_load_dwordx4 v[20:23], v5, s[{S_R1}:{S_R1+3}], 0 offen offset:1040")
    for j in range(16):
        e(f"buffer_load_dwordx4 v[{64+4*j}:{67+4*j}], v4, s[{S_R0}:{S_R0+3}], s28 offen {WQB_POL}")
        if j < 15: e("s_add_u32 s28, s28, 8192")
    srd(S_R1, P_BWUK, SZ_W)
    e("v_lshlrev_b32 v6, 13, v2")
    e("v_lshl_add_u32 v6, v3, 4, v6")
    e("s_lshl_b32 s28, s78, 7")
    e(f"s_lshl_b32 s29, s{S_WAVE}, 4")
    e("s_add_u32 s28, s28, s29")
    e("s_lshl_b32 s28, s28, 13")
    e("s_lshl_b32 s29, s77, 8")
    e("s_add_u32 s28, s28, s29")
    for j in range(4):
        e(f"buffer_load_dwordx4 v[{128+4*j}:{131+4*j}], v6, s[{S_R1}:{S_R1+3}], s28 offen nt")
        if j < 3: e("s_add_u32 s28, s28, 32768")
    srd(S_R2, P_BCKV, SZ_CKV)
    e("s_lshl_b32 s30, s2, 17")
    e(f"s_lshl_b32 s31, s{S_WAVE}, 14")
    e("s_add_u32 s30, s30, s31")
    e(f"s_add_u32 s31, s31, {L_BIG}")
    ckv_dma(range(NB1), 24)
    for a in range(32, 48): e(f"v_mov_b32 v{a}, 0")
    for j in range(16):
        e(f"s_waitcnt vmcnt({15-j+4+NB1})")
        for b in range(2):
            src = 8 + 8*b + (j >> 1)
            if j & 1: e(f"v_and_b32 v{28+b}, 0xffff0000, v{src}")
            else:     e(f"v_lshlrev_b32 v{28+b}, 16, v{src}")
        for k in range(4):
            unpack_fma(64+4*j+k, 30, 31, [32+2*k, 40+2*k], [33+2*k, 41+2*k], [28, 29])
    accs = list(range(32, 48))
    swap_red(accs, list(range(48, 62)) + [63, 7], 16)
    swap_red(accs, list(range(48, 62)) + [63, 7], 32)
    RED1, QF = 0x0000, 0x2000
    e(f"s_lshl_b32 s29, s{S_WAVE}, 10")
    e(f"s_add_u32 s29, s29, {RED1}")
    e("v_lshlrev_b32 v6, 6, v1")
    e("v_add_u32 v6, s29, v6")
    e("v_cmp_gt_u32 vcc, 16, v1")
    e(f"s_and_saveexec_b64 s[{S_EX}:{S_EX+1}], vcc")
    for q in range(4):
        e(f"ds_write_b128 v6, v[{32+4*q}:{35+4*q}] offset:{16*q}")
    e(f"s_mov_b64 exec, s[{S_EX}:{S_EX+1}]")
    e("s_waitcnt lgkmcnt(0)")
    e("s_barrier")
    skip = g.newlab("s1b_skipq")
    e(f"s_cmp_ge_u32 s{S_WAVE}, 4")
    e(f"s_cbranch_scc1 {skip}")
    e("v_and_b32 v24, 127, v0")
    e("v_lshrrev_b32 v25, 7, v0")
    e("v_lshrrev_b32 v26, 3, v24")
    e("v_lshlrev_b32 v26, 6, v26")
    e("v_and_b32 v27, 7, v24")
    e("v_lshl_add_u32 v27, v25, 3, v27")
    e("v_lshl_add_u32 v26, v27, 2, v26")
    for w in range(8):
        e(f"ds_read_b32 v{48+w}, v26 offset:{RED1 + 1024*w}")
    e("s_waitcnt lgkmcnt(0)")
    e("v_add_f32 v48, v48, v49\n  v_add_f32 v50, v50, v51\n  v_add_f32 v52, v52, v53\n  v_add_f32 v54, v54, v55")
    e("v_add_f32 v48, v48, v50\n  v_add_f32 v52, v52, v54\n  v_add_f32 v48, v48, v52")
    e("v_cvt_pk_bf16_f32 v48, v48, v48")
    e("v_lshlrev_b32 v48, 16, v48")
    e("v_lshlrev_b32 v26, 2, v0")
    e(f"ds_write_b32 v26, v48 offset:{QF}")
    e("s_waitcnt lgkmcnt(0)")
    g.lab(skip)
    e("s_barrier")
    e("v_lshlrev_b32 v24, 5, v3")
    e(f"ds_read_b128 v[144:147], v24 offset:{QF}")
    e(f"ds_read_b128 v[148:151], v24 offset:{QF+16}")
    e(f"ds_read_b128 v[152:155], v24 offset:{QF+512}")
    e(f"ds_read_b128 v[156:159], v24 offset:{QF+528}")
    e(f"s_waitcnt vmcnt({NB1}) lgkmcnt(0)")
    for j in range(4):
        for k in range(4):
            d = 128+4*j+k
            e(f"v_lshlrev_b32 v30, 16, v{d}")
            e(f"v_and_b32 v31, 0xffff0000, v{d}")
            if k == 0:
                e(f"v_mul_f32 v28, v30, v144")
                e(f"v_mul_f32 v29, v30, v152")
            else:
                e(f"v_fmac_f32 v28, v30, v{144+2*k}")
                e(f"v_fmac_f32 v29, v30, v{152+2*k}")
            e(f"v_fmac_f32 v28, v31, v{145+2*k}")
            e(f"v_fmac_f32 v29, v31, v{153+2*k}")
        e("s_nop 1")
        for r in [1, 2, 4, 8]:
            e(f"v_add_f32_dpp v28, v28, v28 row_ror:{r} row_mask:0xf bank_mask:0xf")
            e(f"v_add_f32_dpp v29, v29, v29 row_ror:{r} row_mask:0xf bank_mask:0xf")
            e("s_nop 0")
        e(f"v_cmp_eq_u32 vcc, {j}, v3")
        e("s_nop 1")
        e("v_cndmask_b32 v32, v32, v28, vcc")
        e("v_cndmask_b32 v33, v33, v29, vcc")
    e("v_cvt_pk_bf16_f32 v32, v32, v32")
    e("v_cvt_pk_bf16_f32 v33, v33, v33")
    e("s_lshl_b32 s28, s78, 7")
    e(f"s_lshl_b32 s29, s{S_WAVE}, 4")
    e("s_add_u32 s28, s28, s29")
    e("s_lshl_b32 s28, s28, 1")
    e("s_lshl_b32 s29, s77, 10")
    e("s_add_u32 s28, s28, s29")
    e(f"s_add_u32 s28, s28, {WS_QABS}")
    e("s_add_u32 s29, s28, 32768")
    e("v_lshlrev_b32 v6, 3, v3")
    e("v_lshl_add_u32 v6, v2, 1, v6")
    e("v_cmp_gt_u32 vcc, 4, v3")
    e(f"s_and_saveexec_b64 s[{S_EX}:{S_EX+1}], vcc")
    e(f"buffer_store_short v32, v6, s[{S_WS}:{S_WS+3}], s28 offen sc1")
    e(f"buffer_store_short v33, v6, s[{S_WS}:{S_WS+3}], s29 offen sc1")
    e(f"s_mov_b64 exec, s[{S_EX}:{S_EX+1}]")
    e("s_waitcnt vmcnt(0)")
    e("s_barrier")
    skip2 = g.newlab("s1b_skipf")
    e(f"s_cmp_lg_u32 s{S_WAVE}, 0")
    e(f"s_cbranch_scc1 {skip2}")
    publish_flag(1)
    g.lab(skip2)
    ckv_dma(range(NB1, 16), 24)

WQB_POL = os.environ.get("WQB_POL", "")


SCALE_HEX = "0x3db504f3"
LOG2E_HEX = "0x3fb8aa3b"

def round_scale(regs, tmps):
    prs = [(regs[2*i], regs[2*i+1], tmps[i]) for i in range(len(regs)//2)]
    for a, b, t in prs: e(f"v_cvt_pk_bf16_f32 v{t}, v{a}, v{b}")
    for a, b, t in prs:
        e(f"v_lshlrev_b32 v{a}, 16, v{t}")
        e(f"v_and_b32 v{b}, 0xffff0000, v{t}")
    for a, b, t in prs:
        e(f"v_mul_f32 v{a}, {SCALE_HEX}, v{a}")
        e(f"v_mul_f32 v{b}, {SCALE_HEX}, v{b}")
    for a, b, t in prs: e(f"v_cvt_pk_bf16_f32 v{t}, v{a}, v{b}")
    for a, b, t in prs:
        e(f"v_lshlrev_b32 v{a}, 16, v{t}")
        e(f"v_and_b32 v{b}, 0xffff0000, v{t}")

def mask_lanes(vdst, s_first, nl, val, first=True, tmp=254):
    if first: e(f"v_mov_b32 v{vdst}, 0")
    e(f"v_subrev_u32 v{tmp}, s{s_first}, v1")
    e(f"v_cmp_gt_u32 vcc, {nl}, v{tmp}")
    e(f"v_mov_b32 v{tmp}, {val}")
    e(f"v_cndmask_b32 v{vdst}, v{vdst}, v{tmp}, vcc")

def s2a():
    c_("==== S2A: attention chunk (b, kvh, 256 keys)")
    MX, LS, OX = 0x1000, 0x1400, 0x2000
    LK, LV = L_BIG, L_BIG + 0x10000
    e(f"s_lshr_b32 s79, s{S_UNIT}, 6")
    e(f"s_lshr_b32 s80, s{S_UNIT}, 3")
    e("s_and_b32 s80, s80, 7")
    e(f"s_and_b32 s81, s{S_UNIT}, 7")
    srd(S_R0, P_AK, SZ_KV)
    srd(S_R1, P_AV, SZ_KV)
    e("s_lshl_b32 s30, s79, 24")
    e("s_lshl_b32 s28, s80, 21")
    e("s_add_u32 s30, s30, s28")
    e("s_lshl_b32 s28, s81, 16")
    e("s_add_u32 s30, s30, s28")
    e(f"s_add_u32 s30, s30, {6144*256}")
    e(f"s_lshl_b32 s31, s{S_WAVE}, 13")
    e("s_add_u32 s30, s30, s31")
    e("v_lshrrev_b32 v2, 4, v1")
    e("v_and_b32 v3, 15, v1")
    for q in range(4):
        e(f"v_add_u32 v{24+q}, {4*q}, v2")
        e(f"v_and_b32 v{24+q}, 15, v{24+q}")
        e(f"v_xor_b32 v{24+q}, v{24+q}, v3")
        e(f"v_lshlrev_b32 v{24+q}, 4, v{24+q}")
        e(f"v_lshl_add_u32 v{24+q}, v2, 8, v{24+q}")
    for (srdslot, lbase) in ((S_R0, LK), (S_R1, LV)):
        for grp in range(2):
            e(f"s_add_u32 s75, s31, {lbase + grp*4096}")
            e("s_mov_b32 m0, s75")
            e(f"s_add_u32 s76, s30, {grp*4096}")
            for q in range(4):
                e(f"buffer_load_dwordx4 v{24+q}, s[{srdslot}:{srdslot+3}], s76 offen offset:{q*1024} nt lds")
    skip = g.newlab("s2a_nopoll")
    e(f"s_cmp_lg_u32 s{S_WAVE}, 0")
    e(f"s_cbranch_scc1 {skip}")
    e("s_lshl_b32 s28, s80, 2")
    e("s_add_u32 s28, s28, 32")
    mask_lanes(249, 28, 4, 0x01010101)
    poll(249, "s2a")
    g.lab(skip)
    e("s_waitcnt vmcnt(0)")
    e("s_barrier")
    e("v_and_b32 v4, 3, v3")
    e("v_lshlrev_b32 v4, 8, v4")
    e("v_lshl_add_u32 v4, v2, 4, v4")
    e("s_lshl_b32 s28, s79, 13")
    e("s_lshl_b32 s29, s80, 10")
    e("s_add_u32 s28, s28, s29")
    if WS_QA: e(f"s_add_u32 s28, s28, {WS_QA}")
    for s in range(4):
        e(f"buffer_load_dwordx4 v[{96+4*s}:{99+4*s}], v4, s[{S_WS}:{S_WS+3}], s28 offen offset:{64*s} sc1")
    e(f"s_lshl_b32 s28, s{S_WAVE}, 13")
    e(f"s_add_u32 s28, s28, {LK}")
    for s in range(4):
        e(f"v_add_u32 v{8+s}, {4*s}, v2")
        e(f"v_xor_b32 v{8+s}, v{8+s}, v3")
        e(f"v_lshlrev_b32 v{8+s}, 4, v{8+s}")
        e(f"v_lshl_add_u32 v{8+s}, v3, 8, v{8+s}")
        e(f"v_add_u32 v{8+s}, s28, v{8+s}")
    for kb in range(2):
        for s in range(4):
            e(f"ds_read_b128 v[{64+16*kb+4*s}:{67+16*kb+4*s}], v{8+s} offset:{4096*kb}")
    e("v_cmp_gt_u32 vcc, 4, v3")
    e("s_waitcnt vmcnt(0)")
    for r in range(96, 112): e(f"v_cndmask_b32 v{r}, 0, v{r}, vcc")
    e("s_waitcnt lgkmcnt(0)")
    for kb in range(2):
        for s in range(4):
            cc = "0" if s == 0 else f"v[{32+4*kb}:{35+4*kb}]"
            e(f"v_mfma_f32_16x16x32_bf16 v[{32+4*kb}:{35+4*kb}], v[{64+16*kb+4*s}:{67+16*kb+4*s}], v[{96+4*s}:{99+4*s}], {cc}")
    e("v_lshrrev_b32 v4, 2, v3")
    e("v_and_b32 v5, 3, v3")
    e("v_lshl_add_u32 v6, v2, 2, v4")
    e("v_lshrrev_b32 v7, 1, v5")
    e("v_and_b32 v5, 1, v5")
    e("v_lshlrev_b32 v5, 3, v5")
    e(f"s_lshl_b32 s28, s{S_WAVE}, 13")
    e(f"s_add_u32 s28, s28, {LV}")
    for dt in range(8):
        e(f"v_add_u32 v{12+dt}, {2*dt}, v7")
        e(f"v_xor_b32 v{12+dt}, v{12+dt}, v6")
        e(f"v_lshlrev_b32 v{12+dt}, 4, v{12+dt}")
        e(f"v_lshl_add_u32 v{12+dt}, v6, 8, v{12+dt}")
        e(f"v_add3_u32 v{12+dt}, v{12+dt}, v5, s28")
    sc = list(range(32, 40))
    round_scale(sc, [44, 45, 46, 47])
    e("v_max3_f32 v40, v32, v33, v34")
    e("v_max3_f32 v41, v35, v36, v37")
    e("v_max3_f32 v40, v38, v39, v40")
    e("v_max_f32 v40, v40, v41")
    swap_red([40], [41], 16, "max")
    swap_red([40], [41], 32, "max")
    e(f"s_lshl_b32 s28, s{S_WAVE}, 6")
    e("v_lshlrev_b32 v4, 2, v3")
    e("v_add_u32 v5, s28, v4")
    e("v_cmp_gt_u32 vcc, 16, v1")
    e(f"s_and_saveexec_b64 s[{S_EX}:{S_EX+1}], vcc")
    e(f"ds_write_b32 v5, v40 offset:{MX}")
    e(f"s_mov_b64 exec, s[{S_EX}:{S_EX+1}]")
    e("s_waitcnt lgkmcnt(0)")
    e("s_barrier")
    for w in range(8): e(f"ds_read_b32 v{48+w}, v4 offset:{MX + 64*w}")
    e("s_waitcnt lgkmcnt(0)")
    e("v_max3_f32 v40, v48, v49, v50")
    e("v_max3_f32 v41, v51, v52, v53")
    e("v_max3_f32 v40, v54, v55, v40")
    e("v_max_f32 v40, v40, v41")
    for r in sc: e(f"v_sub_f32 v{r}, v{r}, v40")
    for r in sc: e(f"v_mul_f32 v{r}, {LOG2E_HEX}, v{r}")
    for r in sc: e(f"v_exp_f32 v{r}, v{r}")
    e("s_nop 0")
    e("v_add_f32 v41, v32, v33\n  v_add_f32 v42, v34, v35\n  v_add_f32 v43, v36, v37\n  v_add_f32 v44, v38, v39")
    e("v_add_f32 v41, v41, v42\n  v_add_f32 v43, v43, v44\n  v_add_f32 v41, v41, v43")
    swap_red([41], [42], 16)
    swap_red([41], [42], 32)
    e("v_cvt_pk_bf16_f32 v44, v32, v33")
    e("v_cvt_pk_bf16_f32 v45, v34, v35")
    e("v_cvt_pk_bf16_f32 v46, v36, v37")
    e("v_cvt_pk_bf16_f32 v47, v38, v39")
    def pv_reads(dt):
        bse = 112 + 4*(dt % 4)
        e(f"ds_read_b64_tr_b16 v[{bse}:{bse+1}], v{12+dt}")
        e(f"ds_read_b64_tr_b16 v[{bse+2}:{bse+3}], v{12+dt} offset:4096")
    for dt in range(4): pv_reads(dt)
    for dt in range(8):
        bse = 112 + 4*(dt % 4)
        e(f"s_waitcnt lgkmcnt({min(6, 2*(7-dt))})")
        e(f"v_mfma_f32_16x16x32_bf16 v[{128+4*dt}:{131+4*dt}], v[{bse}:{bse+3}], v[44:47], 0")
        if dt + 4 < 8: pv_reads(dt + 4)
    e(f"s_lshl_b32 s28, s{S_WAVE}, 11")
    e("v_lshlrev_b32 v5, 9, v3")
    e("v_lshl_add_u32 v5, v2, 4, v5")
    e("v_add_u32 v5, s28, v5")
    e(f"s_lshl_b32 s28, s{S_WAVE}, 6")
    e("v_add_u32 v6, s28, v4")
    e("v_cmp_gt_u32 vcc, 4, v3")
    e("s_nop 7")
    e(f"s_and_saveexec_b64 s[{S_EX}:{S_EX+1}], vcc")
    for dt in range(8): e(f"ds_write_b128 v5, v[{128+4*dt}:{131+4*dt}] offset:{OX + 64*dt}")
    e(f"s_mov_b64 exec, s[{S_EX}:{S_EX+1}]")
    e("v_cmp_gt_u32 vcc, 16, v1")
    e(f"s_and_saveexec_b64 s[{S_EX}:{S_EX+1}], vcc")
    e(f"ds_write_b32 v6, v41 offset:{LS}")
    e(f"s_mov_b64 exec, s[{S_EX}:{S_EX+1}]")
    e("s_waitcnt lgkmcnt(0)")
    e("s_barrier")
    e("v_lshlrev_b32 v5, 2, v0")
    for w in range(8): e(f"ds_read_b32 v{48+w}, v5 offset:{OX + 2048*w}")
    for w in range(8): e(f"ds_read_b32 v{56+w}, v4 offset:{LS + 64*w}")
    e("s_waitcnt lgkmcnt(8)")
    e("v_add_f32 v48, v48, v49\n  v_add_f32 v50, v50, v51\n  v_add_f32 v52, v52, v53\n  v_add_f32 v54, v54, v55")
    e("v_add_f32 v48, v48, v50\n  v_add_f32 v52, v52, v54\n  v_add_f32 v48, v48, v52")
    e(f"s_lshl_b32 s28, s{S_UNIT}, 11")
    e(f"s_add_u32 s28, s28, {WS_PA}")
    e(f"buffer_store_dword v48, v5, s[{S_WS}:{S_WS+3}], s28 offen sc1")
    e("s_waitcnt lgkmcnt(0)")
    e("v_add_f32 v56, v56, v57\n  v_add_f32 v58, v58, v59\n  v_add_f32 v60, v60, v61\n  v_add_f32 v62, v62, v63")
    e("v_add_f32 v56, v56, v58\n  v_add_f32 v60, v60, v62\n  v_add_f32 v41, v56, v60")
    e(f"s_lshl_b32 s28, s{S_UNIT}, 5")
    e(f"s_add_u32 s28, s28, {WS_SA}")
    e("v_lshlrev_b32 v6, 3, v3")
    e("v_cmp_gt_u32 vcc, 4, v0")
    e(f"s_and_saveexec_b64 s[{S_EX}:{S_EX+1}], vcc")
    skp = g.newlab("s2a_nostat")
    e(f"s_cbranch_execz {skp}")
    e(f"buffer_store_dwordx2 v[40:41], v6, s[{S_WS}:{S_WS+3}], s28 offen sc1")
    g.lab(skp)
    e(f"s_mov_b64 exec, s[{S_EX}:{S_EX+1}]")
    e("s_waitcnt vmcnt(0)")
    e("s_barrier")
    skip = g.newlab("s2a_skipf")
    e(f"s_cmp_lg_u32 s{S_WAVE}, 0")
    e(f"s_cbranch_scc1 {skip}")
    publish_flag(3)
    g.lab(skip)

def s2b():
    c_("==== S2B: latent attention chunk (b, 128 keys), all 32 heads")
    ST = 0x0000
    MX, LS, PT = 0x0000, 0x0400, 0x1000
    LC = L_BIG
    TRP = 1040
    skip = g.newlab("s2b_nopoll")
    e(f"s_cmp_lg_u32 s{S_WAVE}, 0")
    e(f"s_cbranch_scc1 {skip}")
    e("s_mov_b32 s28, 0")
    mask_lanes(249, 28, 32, 0x01010101)
    poll(249, "s2b")
    g.lab(skip)
    e("s_barrier")
    e("s_lshr_b32 s79, s2, 6")
    e("s_lshl_b32 s28, s79, 15")
    e(f"s_lshl_b32 s29, s{S_WAVE}, 12")
    e("s_add_u32 s28, s28, s29")
    e(f"s_add_u32 s28, s28, {WS_QABS}")
    for r in range(4):
        e(f"buffer_load_dwordx4 v[{64+4*r}:{67+4*r}], v240, s[{S_WS}:{S_WS+3}], s28 offen offset:{1024*r} sc1")
    e(f"s_lshl_b32 s29, s{S_WAVE}, 2")
    for r in range(4):
        e(f"s_add_u32 s28, s29, {r}")
        e("s_and_b32 s75, s28, 15")
        e("s_lshl_b32 s75, s75, 4")
        e(f"v_xor_b32 v{8+r}, s75, v240")
        e("s_lshl_b32 s28, s28, 10")
        e(f"v_add_u32 v{8+r}, s28, v{8+r}")
    e("s_waitcnt vmcnt(0)")
    for r in range(4):
        e(f"ds_write_b128 v{8+r}, v[{64+4*r}:{67+4*r}] offset:{ST}")
    e("s_waitcnt lgkmcnt(0)")
    e("s_barrier")
    e("v_lshrrev_b32 v2, 4, v1")
    e("v_and_b32 v3, 15, v1")
    for s in range(4):
        e(f"v_add_u32 v{8+s}, {4*s}, v2")
        e(f"v_xor_b32 v{8+s}, v{8+s}, v3")
        e(f"v_lshlrev_b32 v{8+s}, 4, v{8+s}")
        e(f"v_lshl_add_u32 v{8+s}, v3, 10, v{8+s}")
    for hb in range(2):
        for step in range(16):
            e(f"ds_read_b128 v[{96+(hb*16+step)*4}:{99+(hb*16+step)*4}], v{8+(step&3)} offset:{ST + hb*16384 + (step>>2)*256}")
    e(f"s_lshl_b32 s28, s{S_WAVE}, 14")
    e(f"s_add_u32 s28, s28, {LC}")
    for s in range(4): e(f"v_add_u32 v{12+s}, s28, v{8+s}")
    e("s_waitcnt lgkmcnt(0)")
    e("s_barrier")
    def qk_read(step):
        bse = 72 + 4*(step % 4)
        e(f"ds_read_b128 v[{bse}:{bse+3}], v{12+(step&3)} offset:{(step>>2)*256}")
    for step in range(4): qk_read(step)
    for step in range(16):
        bse = 72 + 4*(step % 4)
        e(f"s_waitcnt lgkmcnt({min(3, 15-step)})")
        for hb in range(2):
            cc = "0" if step == 0 else f"v[{64+4*hb}:{67+4*hb}]"
            e(f"v_mfma_f32_16x16x32_bf16 v[{64+4*hb}:{67+4*hb}], v[{bse}:{bse+3}], v[{96+(hb*16+step)*4}:{99+(hb*16+step)*4}], {cc}")
        if step + 4 < 16: qk_read(step + 4)
    e("v_lshrrev_b32 v4, 2, v3")
    e("v_and_b32 v5, 3, v3")
    e("v_lshrrev_b32 v6, 1, v2")
    e("v_lshl_add_u32 v6, v6, 2, v4")
    e("v_and_b32 v7, 1, v2")
    e("v_lshlrev_b32 v7, 1, v7")
    e("v_lshrrev_b32 v24, 1, v5")
    e("v_add_u32 v7, v7, v24")
    e("v_and_b32 v5, 1, v5")
    e("v_lshlrev_b32 v5, 3, v5")
    e(f"s_and_b32 s28, s{S_WAVE}, 1")
    e("s_lshl_b32 s28, s28, 3")
    e(f"s_lshr_b32 s29, s{S_WAVE}, 1")
    e("s_lshl_b32 s29, s29, 8")
    e(f"s_add_u32 s29, s29, {LC}")
    for t2 in range(2):
        for which in range(2):
            r_ = 16 + 2*t2 + which
            e(f"v_add_u32 v24, {8*which}, v6")
            e(f"v_add3_u32 v{r_}, v7, s28, {4*t2}")
            e(f"v_xor_b32 v{r_}, v{r_}, v24")
            e(f"v_lshlrev_b32 v{r_}, 4, v{r_}")
            e(f"v_lshl_add_u32 v{r_}, v24, 10, v{r_}")
            e(f"v_add3_u32 v{r_}, v{r_}, v5, s29")
            e(f"v_add_u32 v{r_+4}, 0x10000, v{r_}")
    sc = list(range(64, 72))
    round_scale(sc, [24, 25, 26, 27])
    e("v_max3_f32 v28, v64, v65, v66")
    e("v_max_f32 v28, v28, v67")
    e("v_max3_f32 v29, v68, v69, v70")
    e("v_max_f32 v29, v29, v71")
    swap_red([28, 29], [30, 31], 16, "max")
    swap_red([28, 29], [30, 31], 32, "max")
    e(f"s_lshl_b32 s28, s{S_WAVE}, 7")
    e("v_lshlrev_b32 v4, 2, v3")
    e("v_add_u32 v5, s28, v4")
    e("v_cmp_gt_u32 vcc, 16, v1")
    e(f"s_and_saveexec_b64 s[{S_EX}:{S_EX+1}], vcc")
    e(f"ds_write_b32 v5, v28 offset:{MX}")
    e(f"ds_write_b32 v5, v29 offset:{MX+64}")
    e(f"s_mov_b64 exec, s[{S_EX}:{S_EX+1}]")
    e("s_waitcnt lgkmcnt(0)")
    e("s_barrier")
    for hb in range(2):
        for w in range(8): e(f"ds_read_b32 v{72+8*hb+w}, v4 offset:{MX + 128*w + 64*hb}")
    e("s_waitcnt lgkmcnt(0)")
    for hb in range(2):
        o = 72 + 8*hb
        e(f"v_max3_f32 v{28+hb}, v{o}, v{o+1}, v{o+2}")
        e(f"v_max3_f32 v{28+hb}, v{o+3}, v{o+4}, v{28+hb}")
        e(f"v_max3_f32 v{28+hb}, v{o+5}, v{o+6}, v{28+hb}")
        e(f"v_max_f32 v{28+hb}, v{o+7}, v{28+hb}")
    for i, r in enumerate(sc): e(f"v_sub_f32 v{r}, v{r}, v{28 + (i>>2)}")
    for r in sc: e(f"v_mul_f32 v{r}, {LOG2E_HEX}, v{r}")
    for r in sc: e(f"v_exp_f32 v{r}, v{r}")
    e("s_nop 0")
    e("v_add_f32 v30, v64, v65\n  v_add_f32 v31, v66, v67\n  v_add_f32 v30, v30, v31")
    e("v_add_f32 v31, v68, v69\n  v_add_f32 v24, v70, v71\n  v_add_f32 v31, v31, v24")
    swap_red([30, 31], [24, 25], 16)
    swap_red([30, 31], [24, 25], 32)
    e("v_cvt_pk_bf16_f32 v24, v64, v65")
    e("v_cvt_pk_bf16_f32 v25, v66, v67")
    e("v_cvt_pk_bf16_f32 v26, v68, v69")
    e("v_cvt_pk_bf16_f32 v27, v70, v71")
    e(f"s_lshl_b32 s28, s{S_WAVE}, 10")
    e("v_and_b32 v6, 1, v2")
    e("v_lshlrev_b32 v6, 9, v6")
    e("v_lshl_add_u32 v6, v3, 4, v6")
    e("v_lshrrev_b32 v7, 1, v2")
    e("v_lshl_add_u32 v6, v7, 3, v6")
    e("v_add_u32 v6, s28, v6")
    e(f"ds_write_b64 v6, v[24:25] offset:{PT}")
    e(f"ds_write_b64 v6, v[26:27] offset:{PT+256}")
    e("v_cmp_gt_u32 vcc, 16, v1")
    e(f"s_and_saveexec_b64 s[{S_EX}:{S_EX+1}], vcc")
    e(f"ds_write_b32 v5, v30 offset:{LS}")
    e(f"ds_write_b32 v5, v31 offset:{LS+64}")
    e(f"s_mov_b64 exec, s[{S_EX}:{S_EX+1}]")
    e("s_waitcnt lgkmcnt(0)")
    e("s_barrier")
    def pv_reads(kb):
        bs = 72 + 12*(kb % 2)
        e(f"ds_read_b128 v[{bs}:{bs+3}], v240 offset:{PT + 1024*kb}")
        for t2 in range(2):
            for which in range(2):
                ar = 16 + 2*t2 + which + (4 if kb >= 4 else 0)
                e(f"ds_read_b64_tr_b16 v[{bs+4+4*t2+2*which}:{bs+5+4*t2+2*which}], v{ar} offset:{(kb%4)*16384}")
    pv_reads(0); pv_reads(1)
    for kb in range(8):
        bs = 72 + 12*(kb % 2)
        e(f"s_waitcnt lgkmcnt({5 if kb < 7 else 0})")
        for t2 in range(2):
            cc = "0" if kb == 0 else f"v[{32+16*t2}:{47+16*t2}]"
            e(f"v_mfma_f32_32x32x16_bf16 v[{32+16*t2}:{47+16*t2}], v[{bs+4+4*t2}:{bs+7+4*t2}], v[{bs}:{bs+3}], {cc}")
        if kb + 2 < 8: pv_reads(kb + 2)
    e("s_barrier")
    e("v_and_b32 v6, 31, v1")
    e("v_lshrrev_b32 v7, 5, v1")
    e(f"v_mul_u32_u24 v6, {TRP}, v6")
    e("v_lshl_add_u32 v6, v7, 3, v6")
    e(f"s_lshl_b32 s28, s{S_WAVE}, 7")
    e(f"s_add_u32 s28, s28, {LC}")
    e("v_add_u32 v6, s28, v6")
    e("s_nop 7")
    for t2 in range(2):
        for q in range(4):
            a = 32 + 16*t2 + 4*q
            e(f"v_cvt_pk_bf16_f32 v{24+2*(q&1)}, v{a}, v{a+1}")
            e(f"v_cvt_pk_bf16_f32 v{25+2*(q&1)}, v{a+2}, v{a+3}")
            e(f"ds_write_b64 v6, v[{24+2*(q&1)}:{25+2*(q&1)}] offset:{64*t2 + 16*q}")
    e("s_waitcnt lgkmcnt(0)")
    e("s_barrier")
    e(f"s_mul_i32 s28, s{S_WAVE}, {4*TRP}")
    e(f"s_add_u32 s28, s28, {LC}")
    e("v_add_u32 v6, s28, v240")
    for r in range(4): e(f"ds_read_b128 v[{72+4*r}:{75+4*r}], v6 offset:{r*TRP}")
    e("s_lshl_b32 s28, s2, 15")
    e(f"s_lshl_b32 s29, s{S_WAVE}, 12")
    e("s_add_u32 s28, s28, s29")
    e(f"s_add_u32 s28, s28, {WS_PB}")
    e("s_waitcnt lgkmcnt(0)")
    for r in range(4):
        e(f"buffer_store_dwordx4 v[{72+4*r}:{75+4*r}], v240, s[{S_WS}:{S_WS+3}], s28 offen offset:{1024*r} sc1")
    for w in range(8):
        e(f"ds_read_b32 v{88+w}, v4 offset:{LS+128*w}")
        e(f"ds_read_b32 v{96+w}, v4 offset:{LS+128*w+64}")
    e("s_waitcnt lgkmcnt(0)")
    for hb in range(2):
        o = 88 + 8*hb
        e(f"v_add_f32 v{o}, v{o}, v{o+1}\n  v_add_f32 v{o+2}, v{o+2}, v{o+3}\n  v_add_f32 v{o+4}, v{o+4}, v{o+5}\n  v_add_f32 v{o+6}, v{o+6}, v{o+7}")
        e(f"v_add_f32 v{o}, v{o}, v{o+2}\n  v_add_f32 v{o+4}, v{o+4}, v{o+6}\n  v_add_f32 v{30+hb}, v{o}, v{o+4}")
    e("v_mov_b32 v24, v28\n  v_mov_b32 v25, v30\n  v_mov_b32 v26, v29\n  v_mov_b32 v27, v31")
    e("s_lshl_b32 s28, s2, 8")
    e(f"s_add_u32 s28, s28, {WS_SB}")
    e("v_lshlrev_b32 v6, 3, v3")
    e("v_cmp_gt_u32 vcc, 16, v0")
    e(f"s_and_saveexec_b64 s[{S_EX}:{S_EX+1}], vcc")
    skp = g.newlab("s2b_nostat")
    e(f"s_cbranch_execz {skp}")
    e(f"buffer_store_dwordx2 v[24:25], v6, s[{S_WS}:{S_WS+3}], s28 offen sc1")
    e(f"buffer_store_dwordx2 v[26:27], v6, s[{S_WS}:{S_WS+3}], s28 offen offset:128 sc1")
    g.lab(skp)
    e(f"s_mov_b64 exec, s[{S_EX}:{S_EX+1}]")
    e("s_waitcnt vmcnt(0)")
    e("s_barrier")
    skip = g.newlab("s2b_skipf")
    e(f"s_cmp_lg_u32 s{S_WAVE}, 0")
    e(f"s_cbranch_scc1 {skip}")
    publish_flag(3)
    g.lab(skip)


def wave_red(regs, tmps, op):
    e("s_nop 1")
    for r in [1, 2, 4, 8]:
        for x in regs: e(f"v_{op}_f32_dpp v{x}, v{x}, v{x} row_ror:{r} row_mask:0xf bank_mask:0xf")
        if len(regs) < 3: e("s_nop 1")
    swap_red(regs, tmps, 16, op)
    swap_red(regs, tmps, 32, op)

def gemv_rows1k_tail(part, RW=0):
    e(f"s_lshl_b32 s28, s{S_WAVE}, 12")
    e("v_lshlrev_b32 v6, 5, v1")
    e("v_add_u32 v6, s28, v6")
    for b in range(2):
        for hlf in range(2):
            e(f"ds_write_b128 v6, v[{32+8*b+4*hlf}:{35+8*b+4*hlf}] offset:{RW + 2048*b + 16*hlf}")
    e("s_waitcnt lgkmcnt(0)")
    e("s_barrier")
    e("v_lshlrev_b32 v6, 3, v0")
    for w in range(8): e(f"ds_read_b64 v[{48+2*w}:{49+2*w}], v6 offset:{RW + 4096*w}")
    e("v_lshrrev_b32 v7, 8, v0")
    e("v_lshlrev_b32 v7, 18, v7")
    e("v_bfe_u32 v8, v0, 4, 4")
    e("v_lshl_add_u32 v7, v8, 14, v7")
    e("v_and_b32 v8, 15, v0")
    e("v_lshl_add_u32 v7, v8, 3, v7")
    e(f"s_lshl_b32 s28, s{S_UNIT}, 7")
    e(f"s_add_u32 s28, s28, {WS_PO + part*524288}")
    e("s_waitcnt lgkmcnt(0)")
    for k in range(2):
        e(f"v_add_f32 v{48+k}, v{48+k}, v{50+k}\n  v_add_f32 v{52+k}, v{52+k}, v{54+k}\n  v_add_f32 v{56+k}, v{56+k}, v{58+k}\n  v_add_f32 v{60+k}, v{60+k}, v{62+k}")
        e(f"v_add_f32 v{48+k}, v{48+k}, v{52+k}\n  v_add_f32 v{56+k}, v{56+k}, v{60+k}\n  v_add_f32 v{48+k}, v{48+k}, v{56+k}")
    e(f"buffer_store_dwordx2 v[48:49], v7, s[{S_WS}:{S_WS+3}], s28 offen sc1")
    e("s_waitcnt vmcnt(0)")
    e("s_barrier")
    skip = g.newlab("gemv_skipf")
    e(f"s_cmp_lg_u32 s{S_WAVE}, 0")
    e(f"s_cbranch_scc1 {skip}")
    publish_flag(15)
    g.lab(skip)

def gemv_rows1k_body(wbase):
    for a in range(32, 48): e(f"v_mov_b32 v{a}, 0")
    for r in range(4):
        for k in range(4):
            d = wbase + 4*r + k
            e(f"v_lshlrev_b32 v30, 16, v{d}")
            e(f"v_and_b32 v31, 0xffff0000, v{d}")
            for b in range(2):
                e(f"v_fmac_f32 v{32+8*b+2*k}, s{80+4*b+r}, v30")
                e(f"v_fmac_f32 v{33+8*b+2*k}, s{80+4*b+r}, v31")

def s3a():
    c_("==== S3A: combine (b, head, 32 d) + wo rows")
    e("v_lshlrev_b32 v240, 4, v1")
    srd(S_R0, P_AWO, SZ_W)
    e(f"s_lshl_b32 s28, s{S_UNIT}, 5")
    e(f"s_lshl_b32 s29, s{S_WAVE}, 2")
    e("s_add_u32 s28, s28, s29")
    e("s_lshl_b32 s28, s28, 10")
    for r in range(4):
        e(f"buffer_load_dwordx4 v[{128+4*r}:{131+4*r}], v240, s[{S_R0}:{S_R0+3}], s28 offen offset:{1024*r} nt")
    e(f"s_lshr_b32 s80, s{S_UNIT}, 4")
    skip = g.newlab("s3a_nopoll")
    e(f"s_cmp_lg_u32 s{S_WAVE}, 0")
    e(f"s_cbranch_scc1 {skip}")
    e("s_lshl_b32 s28, s80, 1")
    e("s_add_u32 s28, s28, 32")
    mask_lanes(249, 28, 2, 0x02020202)
    e("s_add_u32 s28, s28, 16")
    mask_lanes(249, 28, 2, 0x02020202, first=False)
    poll(249, "s3a")
    g.lab(skip)
    e("s_barrier")
    e("v_lshrrev_b32 v2, 5, v1")
    e("v_and_b32 v3, 31, v1")
    e("v_lshlrev_b32 v4, 17, v2")
    e("v_lshl_add_u32 v4, v3, 2, v4")
    e("v_lshlrev_b32 v5, 11, v2")
    e("s_lshl_b32 s28, s80, 14")
    e(f"s_lshr_b32 s29, s{S_UNIT}, 2")
    e("s_and_b32 s29, s29, 3")
    e("s_lshl_b32 s75, s29, 9")
    e("s_add_u32 s28, s28, s75")
    e(f"s_and_b32 s75, s{S_UNIT}, 3")
    e("s_lshl_b32 s75, s75, 7")
    e("s_add_u32 s28, s28, s75")
    e(f"s_add_u32 s28, s28, {WS_PA}")
    e("s_lshl_b32 s76, s80, 8")
    e("s_lshl_b32 s75, s29, 3")
    e("s_add_u32 s76, s76, s75")
    e(f"s_add_u32 s76, s76, {WS_SA}")
    for ch in range(8):
        e(f"buffer_load_dwordx2 v[{72+2*ch}:{73+2*ch}], v5, s[{S_WS}:{S_WS+3}], s76 offen offset:{32*ch} sc1")
    for ch in range(8):
        e(f"buffer_load_dword v{64+ch}, v4, s[{S_WS}:{S_WS+3}], s28 offen sc1")
        if ch < 7: e("s_add_u32 s28, s28, 2048")
    e("s_waitcnt vmcnt(8)")
    e("v_max3_f32 v24, v72, v74, v76")
    e("v_max3_f32 v24, v78, v80, v24")
    e("v_max3_f32 v24, v82, v84, v24")
    e("v_max_f32 v24, v86, v24")
    for ch in range(8): e(f"v_sub_f32 v{72+2*ch}, v{72+2*ch}, v24")
    for ch in range(8): e(f"v_mul_f32 v{72+2*ch}, {LOG2E_HEX}, v{72+2*ch}")
    for ch in range(8): e(f"v_exp_f32 v{72+2*ch}, v{72+2*ch}")
    e("v_mul_f32 v25, v72, v73")
    for ch in range(1, 8): e(f"v_fmac_f32 v25, v{72+2*ch}, v{73+2*ch}")
    e("s_waitcnt vmcnt(0)")
    e("v_mul_f32 v26, v72, v64")
    for ch in range(1, 8): e(f"v_fmac_f32 v26, v{72+2*ch}, v{64+ch}")
    e("v_rcp_f32 v25, v25")
    e("s_nop 0")
    e("v_mul_f32 v26, v26, v25")
    e("v_cvt_pk_bf16_f32 v26, v26, v26")
    e("v_lshlrev_b32 v26, 16, v26")
    e(f"s_lshl_b32 s28, s{S_WAVE}, 2")
    for b in range(2):
        for r in range(4):
            e(f"s_add_u32 s29, s28, {32*b + r}")
            e(f"v_readlane_b32 s{80+4*b+r}, v26, s29")
    e("s_nop 1")
    e("s_waitcnt vmcnt(0)")
    gemv_rows1k_body(128)
    gemv_rows1k_tail(0)

def s3b():
    c_("==== S3B-i: combine ctx_c[b][h][128 c of quarter] then x w_uv rows -> partial ctx")
    X1, XF, RED = 0x0000, 0x1000, 0x2000
    e("v_lshrrev_b32 v2, 4, v1")
    e("v_and_b32 v3, 15, v1")
    srd(S_R1, P_BWUV, SZ_W)
    e("v_lshlrev_b32 v6, 13, v2")
    e("v_lshl_add_u32 v6, v3, 4, v6")
    e("s_lshl_b32 s28, s78, 7")
    e(f"s_lshl_b32 s29, s{S_WAVE}, 4")
    e("s_add_u32 s28, s28, s29")
    e("s_lshl_b32 s28, s28, 13")
    e("s_lshl_b32 s29, s77, 8")
    e("s_add_u32 s28, s28, s29")
    for j in range(4):
        e(f"buffer_load_dwordx4 v[{128+4*j}:{131+4*j}], v6, s[{S_R1}:{S_R1+3}], s28 offen nt")
        if j < 3: e("s_add_u32 s28, s28, 32768")
    srd(S_R0, P_BWO, SZ_W)
    e("s_lshl_b32 s28, s77, 7")
    e("s_lshl_b32 s29, s78, 5")
    e("s_add_u32 s28, s28, s29")
    e(f"s_lshl_b32 s29, s{S_WAVE}, 2")
    e("s_add_u32 s28, s28, s29")
    e("s_lshl_b32 s28, s28, 10")
    for r in range(4):
        e(f"buffer_load_dwordx4 v[{144+4*r}:{147+4*r}], v240, s[{S_R0}:{S_R0+3}], s28 offen offset:{1024*r} nt")
    skip = g.newlab("s3b_nopoll")
    e(f"s_cmp_lg_u32 s{S_WAVE}, 0")
    e(f"s_cbranch_scc1 {skip}")
    e("s_mov_b32 s28, 0")
    mask_lanes(249, 28, 32, 0x02020202)
    poll(249, "s3b")
    g.lab(skip)
    e("s_barrier")
    e("v_lshlrev_b32 v4, 8, v1")
    e("s_lshl_b32 s28, s77, 3")
    e(f"s_add_u32 s28, s28, {WS_SB}")
    e("s_add_u32 s29, s28, 16384")
    e(f"buffer_load_dwordx2 v[64:65], v4, s[{S_WS}:{S_WS+3}], s28 offen sc1")
    e(f"buffer_load_dwordx2 v[66:67], v4, s[{S_WS}:{S_WS+3}], s29 offen sc1")
    e(f"s_lshl_b32 s28, s{S_WAVE}, 19")
    e("s_lshl_b32 s29, s77, 10")
    e("s_add_u32 s28, s28, s29")
    e("s_lshl_b32 s29, s78, 8")
    e("s_add_u32 s28, s28, s29")
    e(f"s_add_u32 s28, s28, {WS_PB}")
    e("v_lshlrev_b32 v5, 2, v1")
    for u in range(16):
        e(f"buffer_load_dword v{96+u}, v5, s[{S_WS}:{S_WS+3}], s28 offen sc1")
        if u < 15: e("s_add_u32 s28, s28, 32768")
    e("s_waitcnt vmcnt(16)")
    e("v_mov_b32 v24, v64\n  v_mov_b32 v25, v66")
    wave_red([24, 25], [26, 27], "max")
    e("v_sub_f32 v64, v64, v24\n  v_sub_f32 v66, v66, v25")
    e(f"v_mul_f32 v64, {LOG2E_HEX}, v64\n  v_mul_f32 v66, {LOG2E_HEX}, v66")
    e("v_exp_f32 v64, v64\n  v_exp_f32 v66, v66")
    e("s_nop 0")
    e("v_mul_f32 v24, v64, v65\n  v_mul_f32 v25, v66, v67")
    wave_red([24, 25], [26, 27], "add")
    e("v_rcp_f32 v24, v24\n  v_rcp_f32 v25, v25")
    e("s_nop 0")
    e("v_mul_f32 v64, v64, v24\n  v_mul_f32 v66, v66, v25")
    e(f"s_lshr_b32 s28, s{S_WAVE}, 2")
    e("s_cmp_eq_u32 s28, 0")
    sl = g.newlab("s3b_selb")
    e(f"s_cbranch_scc1 {sl}")
    e("v_mov_b32 v64, v66")
    g.lab(sl)
    e(f"s_and_b32 s28, s{S_WAVE}, 3")
    e("s_lshl_b32 s28, s28, 4")
    e("s_nop 0")
    for u in range(16):
        e(f"v_readlane_b32 s{80+u}, v64, s28")
        if u < 15: e("s_add_u32 s28, s28, 1")
    e("v_mov_b32 v28, 0\n  v_mov_b32 v29, 0")
    for u in range(16):
        e(f"s_waitcnt vmcnt({15-u})")
        e(f"v_lshlrev_b32 v30, 16, v{96+u}")
        e(f"v_and_b32 v31, 0xffff0000, v{96+u}")
        e(f"v_fmac_f32 v28, s{80+u}, v30")
        e(f"v_fmac_f32 v29, s{80+u}, v31")
    e(f"s_lshl_b32 s28, s{S_WAVE}, 9")
    e("v_lshlrev_b32 v6, 3, v1")
    e("v_add_u32 v6, s28, v6")
    e(f"ds_write_b64 v6, v[28:29] offset:{X1}")
    e("s_waitcnt lgkmcnt(0)")
    e("s_barrier")
    sk = g.newlab("s3b_sk1")
    e(f"s_cmp_ge_u32 s{S_WAVE}, 4")
    e(f"s_cbranch_scc1 {sk}")
    e("v_lshrrev_b32 v6, 7, v0")
    e("v_lshlrev_b32 v6, 11, v6")
    e("v_and_b32 v7, 127, v0")
    e("v_lshl_add_u32 v6, v7, 2, v6")
    for w in range(4): e(f"ds_read_b32 v{48+w}, v6 offset:{X1 + 512*w}")
    e("s_waitcnt lgkmcnt(0)")
    e("v_add_f32 v48, v48, v49\n  v_add_f32 v50, v50, v51\n  v_add_f32 v48, v48, v50")
    e("v_lshlrev_b32 v6, 2, v0")
    e(f"ds_write_b32 v6, v48 offset:{XF}")
    e("s_waitcnt lgkmcnt(0)")
    g.lab(sk)
    e("s_barrier")
    e(f"s_lshl_b32 s28, s{S_WAVE}, 6")
    e("v_lshlrev_b32 v6, 2, v2")
    e("v_add_u32 v6, s28, v6")
    for b in range(2):
        for jj in range(4):
            e(f"ds_read_b32 v{16+4*b+jj}, v6 offset:{XF + 512*b + 16*jj}")
    for a in range(32, 48): e(f"v_mov_b32 v{a}, 0")
    e("s_waitcnt lgkmcnt(0)")
    for jj in range(4):
        for k in range(4):
            unpack_fma(128+4*jj+k, 30, 31, [32+2*k, 40+2*k], [33+2*k, 41+2*k], [16+jj, 20+jj])
    accs = list(range(32, 48))
    swap_red(accs, list(range(48, 64)), 16)
    swap_red(accs, list(range(48, 64)), 32)
    e(f"s_lshl_b32 s29, s{S_WAVE}, 10")
    e(f"s_add_u32 s29, s29, {RED}")
    e("v_lshlrev_b32 v6, 6, v1")
    e("v_add_u32 v6, s29, v6")
    e("v_cmp_gt_u32 vcc, 16, v1")
    e(f"s_and_saveexec_b64 s[{S_EX}:{S_EX+1}], vcc")
    for q in range(4):
        e(f"ds_write_b128 v6, v[{32+4*q}:{35+4*q}] offset:{16*q}")
    e(f"s_mov_b64 exec, s[{S_EX}:{S_EX+1}]")
    e("s_waitcnt lgkmcnt(0)")
    e("s_barrier")
    sk = g.newlab("s3b_sk2")
    e(f"s_cmp_ge_u32 s{S_WAVE}, 4")
    e(f"s_cbranch_scc1 {sk}")
    e("v_and_b32 v24, 127, v0")
    e("v_lshrrev_b32 v25, 7, v0")
    e("v_lshrrev_b32 v26, 3, v24")
    e("v_lshlrev_b32 v26, 6, v26")
    e("v_and_b32 v27, 7, v24")
    e("v_lshl_add_u32 v27, v25, 3, v27")
    e("v_lshl_add_u32 v26, v27, 2, v26")
    for w in range(8):
        e(f"ds_read_b32 v{48+w}, v26 offset:{RED + 1024*w}")
    e("s_waitcnt lgkmcnt(0)")
    e("v_add_f32 v48, v48, v49\n  v_add_f32 v50, v50, v51\n  v_add_f32 v52, v52, v53\n  v_add_f32 v54, v54, v55")
    e("v_add_f32 v48, v48, v50\n  v_add_f32 v52, v52, v54\n  v_add_f32 v48, v48, v52")
    e("s_lshl_b32 s28, s77, 2")
    e("s_add_u32 s28, s28, s78")
    e("s_lshl_b32 s28, s28, 10")
    e(f"s_add_u32 s28, s28, {WS_PC}")
    e("v_lshlrev_b32 v6, 2, v0")
    e(f"buffer_store_dword v48, v6, s[{S_WS}:{S_WS+3}], s28 offen sc1")
    e("s_waitcnt vmcnt(0)")
    g.lab(sk)
    e("s_barrier")
    sk = g.newlab("s3b_skf")
    e(f"s_cmp_lg_u32 s{S_WAVE}, 0")
    e(f"s_cbranch_scc1 {sk}")
    publish_flag(7)
    e("s_lshr_b32 s28, s77, 2")
    e("s_and_b32 s29, s77, 3")
    e("s_lshl_b32 s29, s29, 3")
    e("s_add_u32 s28, s28, s29")
    e("s_and_b32 s29, s28, 3")
    e("s_lshl_b32 s29, s29, 3")
    e("s_lshl_b32 s75, 4, s29")
    e("v_mov_b32 v248, s75")
    e("s_lshr_b32 s28, s28, 2")
    e("v_mov_b32 v249, 0")
    for cq in range(4):
        e(f"v_cmp_eq_u32 vcc, s28, v1")
        e("s_nop 1")
        e("v_cndmask_b32 v249, v249, v248, vcc")
        if cq < 3: e("s_add_u32 s28, s28, 8")
    poll(249, "s3bii")
    g.lab(sk)
    e("s_barrier")
    c_("==== S3B-ii: ctx (sum of 4 quarter partials, bf16) x w_o rows")
    e("v_and_b32 v2, 7, v1")
    e("v_lshrrev_b32 v3, 2, v2")
    e("v_lshlrev_b32 v4, 9, v3")
    e("v_and_b32 v3, 3, v2")
    e("v_lshl_add_u32 v4, v3, 2, v4")
    e("s_lshl_b32 s28, s77, 12")
    e("s_lshl_b32 s29, s78, 7")
    e("s_add_u32 s28, s28, s29")
    e(f"s_lshl_b32 s29, s{S_WAVE}, 4")
    e("s_add_u32 s28, s28, s29")
    e(f"s_add_u32 s28, s28, {WS_PC}")
    for cq in range(4):
        e(f"buffer_load_dword v{64+cq}, v4, s[{S_WS}:{S_WS+3}], s28 offen offset:{1024*cq} sc1")
    e("s_waitcnt vmcnt(0)")
    e("v_add_f32 v64, v64, v65\n  v_add_f32 v66, v66, v67\n  v_add_f32 v26, v64, v66")
    e("v_cvt_pk_bf16_f32 v26, v26, v26")
    e("v_lshlrev_b32 v26, 16, v26")
    e("s_nop 0")
    for i in range(8): e(f"v_readlane_b32 s{80+i}, v26, {i}")
    e("s_nop 1")
    gemv_rows1k_body(144)
    gemv_rows1k_tail(1)

def s4():
    c_("==== S4: final reduce (A-CUs i<64): 32 outputs x 128 partials")
    R4 = 0x0000
    e(f"s_cmp_ge_u32 s{S_UNIT}, 64")
    e("s_cbranch_scc1 L_END")
    skip = g.newlab("s4_nopoll")
    e(f"s_cmp_lg_u32 s{S_WAVE}, 0")
    e(f"s_cbranch_scc1 {skip}")
    e("v_mov_b32 v249, 0x08080808")
    poll(249, "s4")
    g.lab(skip)
    e("s_barrier")
    e(f"s_lshl_b32 s28, s{S_UNIT}, 14")
    e(f"s_lshl_b32 s29, s{S_WAVE}, 11")
    e("s_add_u32 s28, s28, s29")
    e(f"s_add_u32 s28, s28, {WS_PO}")
    e(f"buffer_load_dwordx4 v[32:35], v240, s[{S_WS}:{S_WS+3}], s28 offen sc1")
    e(f"buffer_load_dwordx4 v[36:39], v240, s[{S_WS}:{S_WS+3}], s28 offen offset:1024 sc1")
    e("s_waitcnt vmcnt(0)")
    for k in range(4): e(f"v_add_f32 v{32+k}, v{32+k}, v{36+k}")
    e("s_nop 1")
    for k in range(4): e(f"v_add_f32_dpp v{32+k}, v{32+k}, v{32+k} row_ror:8 row_mask:0xf bank_mask:0xf")
    swap_red([32, 33, 34, 35], [36, 37, 38, 39], 16)
    swap_red([32, 33, 34, 35], [36, 37, 38, 39], 32)
    e(f"s_lshl_b32 s28, s{S_WAVE}, 7")
    e("v_add_u32 v6, s28, v240")
    e("v_cmp_gt_u32 vcc, 8, v1")
    e(f"s_and_saveexec_b64 s[{S_EX}:{S_EX+1}], vcc")
    e(f"ds_write_b128 v6, v[32:35] offset:{R4}")
    e(f"s_mov_b64 exec, s[{S_EX}:{S_EX+1}]")
    e("s_waitcnt lgkmcnt(0)")
    e("s_barrier")
    e(f"s_cmp_lg_u32 s{S_WAVE}, 0")
    e("s_cbranch_scc1 L_END")
    e("v_lshlrev_b32 v6, 2, v1")
    for w in range(8): e(f"ds_read_b32 v{48+w}, v6 offset:{R4 + 128*w}")
    e("s_waitcnt lgkmcnt(0)")
    e("v_add_f32 v48, v48, v49\n  v_add_f32 v50, v50, v51\n  v_add_f32 v52, v52, v53\n  v_add_f32 v54, v54, v55")
    e("v_add_f32 v48, v48, v50\n  v_add_f32 v52, v52, v54\n  v_add_f32 v48, v48, v52")
    e("v_cvt_pk_bf16_f32 v48, v48, v48")
    srd(S_R0, P_OUT, 4096)
    e(f"s_lshr_b32 s28, s{S_UNIT}, 5")
    e("s_lshl_b32 s28, s28, 10")
    e(f"s_lshr_b32 s29, s{S_UNIT}, 4")
    e("s_and_b32 s29, s29, 1")
    e("s_lshl_b32 s29, s29, 11")
    e("s_add_u32 s28, s28, s29")
    e(f"s_and_b32 s29, s{S_UNIT}, 15")
    e("s_lshl_b32 s29, s29, 6")
    e("s_add_u32 s28, s28, s29")
    e("v_lshlrev_b32 v6, 1, v1")
    e("v_cmp_gt_u32 vcc, 32, v1")
    e(f"s_and_saveexec_b64 s[{S_EX}:{S_EX+1}], vcc")
    e(f"buffer_store_short v48, v6, s[{S_R0}:{S_R0+3}], s28 offen")
    e(f"s_mov_b64 exec, s[{S_EX}:{S_EX+1}]")

def epilogue():
    g.lab("L_END")
    e("s_endpgm")
    g.L.append('.section .rodata,"a"')
    g.L.append(".p2align 6")
    g.L.append(f".amdhsa_kernel {KNAME}_kernel")
    g.L.append("  .amdhsa_next_free_vgpr 256")
    g.L.append("  .amdhsa_next_free_sgpr 102")
    g.L.append("  .amdhsa_accum_offset 256")
    g.L.append("  .amdhsa_group_segment_fixed_size 0")
    g.L.append("  .amdhsa_kernarg_size 112")
    g.L.append("  .amdhsa_user_sgpr_count 2")
    g.L.append("  .amdhsa_user_sgpr_kernarg_segment_ptr 1")
    g.L.append("  .amdhsa_system_sgpr_workgroup_id_x 1")
    g.L.append(".end_amdhsa_kernel")

def main():
    prologue()
    s1a()
    if STOP >= 2:
        s2a()
    if STOP >= 3:
        s3a()
    if STOP >= 4:
        s4()
    e("s_branch L_END")
    g.lab("L_BPATH")
    s1b()
    if STOP >= 2:
        s2b()
    if STOP >= 3:
        s3b()
    e("s_branch L_END")
    epilogue()
    open(OUTPATH, "w").write(g.text())
    print("wrote", OUTPATH, len(g.L), "lines")

if __name__ == "__main__":
    main()
```
